```python
import torch

def _softmax(x, axis=-1):
    return torch.softmax(x, dim=axis)
def _gelu(x):
    return torch.nn.functional.gelu(x, approximate="tanh")
def _silu(x):
    return torch.nn.functional.silu(x)
def _sigmoid(x):
    return torch.sigmoid(x)
def _layernorm(x, axis=-1, eps=1e-5):
    m = x.mean(dim=axis, keepdim=True)
    v = x.var(dim=axis, keepdim=True, unbiased=False)
    return (x - m) / torch.sqrt(v + eps)
def _scatter_add(tgt, idx, src, axis=0):
    return tgt.clone().index_add_(axis, idx, src)
def _segment_sum(src, seg, n):
    out = torch.zeros((n,) + src.shape[1:], dtype=src.dtype)
    return out.index_add_(0, seg, src)
def _pad(x, pw):
    flat = tuple(v for pair in reversed(pw) for v in pair)
    return torch.nn.functional.pad(x, flat)

kernel_name = 'concat_heads__gqa_block_cached__gqa_block_cached__near_ridge'

def setup_inputs():

    _w = (lambda a: (lambda t: t.to(torch.bfloat16) if t.is_floating_point() else t)(torch.as_tensor(a)))
    def _A_setup():
        B, Sq, D = 16, 96, 640
        Hq, Hkv, Sk, Dh = 32, 32, 512, 192
        assert Hq % Hkv == 0, (Hq, Hkv)
        return {
            "x": _w((lambda *s: torch.randn(*s, dtype=torch.bfloat16) * 0.8)(B, Sq, D)),
            "k_cache": _w((lambda *s: torch.randn(*s, dtype=torch.bfloat16) * 0.8)(B, Hkv, Sk, Dh)),
            "v_cache": _w((lambda *s: torch.randn(*s, dtype=torch.bfloat16) * 0.05)(B, Hkv, Sk, Dh)),
            "wq": _w((lambda *s: torch.randn(*s, dtype=torch.bfloat16) * 0.8)(D, Hq * Dh) * (D ** -0.5)),
            "wo": _w((lambda *s: torch.randn(*s, dtype=torch.bfloat16) * 0.05)(Hq * Dh, D) * ((Hq * Dh) ** -0.5)),
        }
    _A_in = _A_setup()

    def _B_setup():
        B, Sq, D = 16, 96, 640
        Hq, Hkv, Sk, Dh = 32, 32, 512, 192
        assert Hq % Hkv == 0, (Hq, Hkv)
        return {
            "x": _w((lambda *s: torch.randn(*s, dtype=torch.bfloat16) * 0.8)(B, Sq, D)),
            "k_cache": _w((lambda *s: torch.randn(*s, dtype=torch.bfloat16) * 0.8)(B, Hkv, Sk, Dh)),
            "v_cache": _w((lambda *s: torch.randn(*s, dtype=torch.bfloat16) * 0.05)(B, Hkv, Sk, Dh)),
            "wq": _w((lambda *s: torch.randn(*s, dtype=torch.bfloat16) * 0.8)(D, Hq * Dh) * (D ** -0.5)),
            "wo": _w((lambda *s: torch.randn(*s, dtype=torch.bfloat16) * 0.05)(Hq * Dh, D) * ((Hq * Dh) ** -0.5)),
        }
    _B_in = _B_setup()

    return {
        "A_x": _A_in["x"],
        "A_k_cache": _A_in["k_cache"],
        "A_v_cache": _A_in["v_cache"],
        "A_wq": _A_in["wq"],
        "A_wo": _A_in["wo"],
        "B_x": _B_in["x"],
        "B_k_cache": _B_in["k_cache"],
        "B_v_cache": _B_in["v_cache"],
        "B_wq": _B_in["wq"],
        "B_wo": _B_in["wo"],
    }

def reference(A_x, A_k_cache, A_v_cache, A_wq, A_wo, B_x, B_k_cache, B_v_cache, B_wq, B_wo):
    def _A_ref(x, k_cache, v_cache, wq, wo):
        B, Sq, D = x.shape
        Hq, Dh = 32, 192
        Hkv = k_cache.shape[1]
        rep = Hq // Hkv
        q = (lambda x, *d: x.permute(*d))((x @ wq).reshape(B, Sq, Hq, Dh), 0, 2, 1, 3)
        k = (lambda x, n, axis: torch.repeat_interleave(x, n, dim=axis))(k_cache, rep, axis=1)
        v = (lambda x, n, axis: torch.repeat_interleave(x, n, dim=axis))(v_cache, rep, axis=1)
        scores = torch.einsum("bhqd,bhkd->bhqk", q, k) * (Dh ** -0.5)
        p = _softmax(scores, axis=-1)
        o = torch.einsum("bhqk,bhkd->bhqd", p, v)
        return (lambda x, *d: x.permute(*d))(o, 0, 2, 1, 3).reshape(B, Sq, Hq * Dh) @ wo

    def _B_ref(x, k_cache, v_cache, wq, wo):
        B, Sq, D = x.shape
        Hq, Dh = 32, 192
        Hkv = k_cache.shape[1]
        rep = Hq // Hkv
        q = (lambda x, *d: x.permute(*d))((x @ wq).reshape(B, Sq, Hq, Dh), 0, 2, 1, 3)
        k = (lambda x, n, axis: torch.repeat_interleave(x, n, dim=axis))(k_cache, rep, axis=1)
        v = (lambda x, n, axis: torch.repeat_interleave(x, n, dim=axis))(v_cache, rep, axis=1)
        scores = torch.einsum("bhqd,bhkd->bhqk", q, k) * (Dh ** -0.5)
        p = _softmax(scores, axis=-1)
        o = torch.einsum("bhqk,bhkd->bhqd", p, v)
        return (lambda x, *d: x.permute(*d))(o, 0, 2, 1, 3).reshape(B, Sq, Hq * Dh) @ wo

    a = _A_ref(A_x, A_k_cache, A_v_cache, A_wq, A_wo)
    b = _B_ref(B_x, B_k_cache, B_v_cache, B_wq, B_wo)
    return torch.concatenate([a, b], axis=-1)
```

```python
import sys
HDR = """; @launch grid=({grid},1,1) block=({block},1,1) lds={lds}
.amdgcn_target "amdgcn-amd-amdhsa--gfx950"
.text
.globl mb_kernel
.p2align 8
.type mb_kernel,@function
mb_kernel:
"""
FTR = """
.section .rodata,"a"
.p2align 6
.amdhsa_kernel mb_kernel
  .amdhsa_next_free_vgpr {vgpr}
  .amdhsa_next_free_sgpr 102
  .amdhsa_accum_offset {acc}
  .amdhsa_group_segment_fixed_size 0
  .amdhsa_kernarg_size 24
  .amdhsa_user_sgpr_count 2
  .amdhsa_user_sgpr_kernarg_segment_ptr 1
  .amdhsa_system_sgpr_workgroup_id_x 1
.end_amdhsa_kernel
"""
PRO = """
  s_load_dwordx4 s[4:7], s[0:1], 0
  s_load_dwordx2 s[8:9], s[0:1], 16
  s_memrealtime s[40:41]
  s_memtime s[42:43]
  s_waitcnt lgkmcnt(0)
  s_mov_b32 s12, s4
  s_mov_b32 s13, s5
  s_mov_b32 s14, 0x20000000
  s_mov_b32 s15, 0x20000
  s_mov_b32 s16, s6
  s_mov_b32 s17, s7
  s_mov_b32 s18, 0x4000000
  s_mov_b32 s19, 0x20000
  s_mov_b32 s20, s8
  s_mov_b32 s21, s9
  s_mov_b32 s22, 0x100000
  s_mov_b32 s23, 0x20000
  v_lshrrev_b32 v1, 6, v0
  s_nop 0
  v_readfirstlane_b32 s24, v1
  v_and_b32 v2, 63, v0
  v_lshlrev_b32 v2, 4, v2          ; lane*16
"""
EPI = """
  s_waitcnt vmcnt(0)
  s_barrier
  s_memrealtime s[44:45]
  s_memtime s[46:47]
  s_waitcnt lgkmcnt(0)
  v_mov_b32 v4, s40
  v_mov_b32 v5, s41
  v_mov_b32 v6, s42
  v_mov_b32 v7, s43
  v_mov_b32 v8, s44
  v_mov_b32 v9, s45
  v_mov_b32 v10, s46
  v_mov_b32 v11, s47
  s_lshl_b32 s30, s2, 5
  v_mov_b32 v3, s30
  v_cmp_eq_u32 vcc, 0, v0
  s_and_saveexec_b64 s[32:33], vcc
  s_cbranch_execz L_end
  buffer_store_dwordx4 v[4:7], v3, s[20:23], 0 offen
  buffer_store_dwordx4 v[8:11], v3, s[20:23], 0 offen offset:16
L_end:
  s_endpgm
"""
def stream(nw, depth, src, total_kb, flags="", region_kb=None):
    ring = min(depth + 1, 160 // nw)
    ring = max(r for r in (1,2,4,8,16,32,64) if r <= ring) if False else ring
    unroll = ring
    lds = 163840
    s = HDR.format(grid=256, block=64 * nw, lds=lds) + PRO
    srd = "s[12:15]" if src == "hbm" else "s[16:19]"
    if src == "hbm":
        s += f"  s_mul_i32 s25, s2, {total_kb*1024}\n"
    else:
        s += f"  s_and_b32 s25, s2, 7\n  s_mul_i32 s25, s25, {region_kb*1024}\n"
    s += f"  s_lshl_b32 s26, s24, 10\n  s_add_u32 s25, s25, s26   ; base\n"
    s += f"  s_mul_i32 s27, s24, {ring*1024}\n"
    s += f"  s_mov_b32 s28, 0\n"
    n_iter = total_kb // nw // unroll
    s += f"  s_mov_b32 s29, {n_iter}\nL_loop:\n"
    for u in range(unroll):
        s += f"  s_add_u32 m0, s27, {u*1024}\n"
        s += f"  s_add_u32 s30, s25, s28\n"
        s += f"  buffer_load_dwordx4 v2, {srd}, s30 offen {flags} lds\n"
        s += f"  s_add_u32 s28, s28, {nw*1024}\n"
        if src != "hbm":
            s += f"  s_cmp_ge_u32 s28, {region_kb*1024}\n  s_cselect_b32 s28, 0, s28\n"
        s += f"  s_waitcnt vmcnt({min(depth,ring)-1})\n"
    s += "  s_sub_u32 s29, s29, 1\n  s_cmp_lg_u32 s29, 0\n  s_cbranch_scc1 L_loop\n"
    s += EPI + FTR.format(vgpr=32, acc=32)
    return s, n_iter * unroll * nw
if __name__ == "__main__":
    names = []
    for nw in (1, 2, 4, 8):
        for depth in (8, 16, 32, 62):
            if nw * depth > 160: continue
            for fl in ("", "nt"):
                s, kb = stream(nw, depth, "hbm", 1536, fl)
                n = f"hbm_w{nw}_d{depth}_{fl}_{kb}.s"; open(n, "w").write(s); names.append(n)
            s, kb = stream(nw, depth, "l2", 4096, "", 1024)
            n = f"l2_w{nw}_d{depth}_{kb}.s"; open(n, "w").write(s); names.append(n)
    print(" ".join(names))
```

```python
from gen_stream import HDR, FTR, PRO
def iss(n, total=False, grid=256):
    s = HDR.format(grid=grid, block=64, lds=163840) + PRO
    s += f"  s_mul_i32 s25, s2, {1536*1024}\n  s_mov_b32 m0, 0\n  s_nop 0\n"
    s += "  buffer_load_dwordx4 v2, s[12:15], s25 offen nt lds\n  s_waitcnt vmcnt(0)\n  s_add_u32 s25, s25, 65536\n"
    s += "  s_memtime s[42:43]\n  s_waitcnt lgkmcnt(0)\n"
    for i in range(n):
        if i % 4 == 0:
            s += f"  s_mov_b32 m0, {i*1024}\n  s_add_u32 s25, s25, 4096\n"
        s += f"  buffer_load_dwordx4 v2, s[12:15], s25 offen offset:{(i%4)*1024} nt lds\n"
    if total: s += "  s_waitcnt vmcnt(0)\n"
    s += "  s_memtime s[46:47]\n  s_waitcnt lgkmcnt(0)\n  s_waitcnt vmcnt(0)\n"
    s += """
  s_memrealtime s[44:45]
  s_waitcnt lgkmcnt(0)
  v_mov_b32 v4, s40
  v_mov_b32 v5, s41
  v_mov_b32 v6, s42
  v_mov_b32 v7, s43
  v_mov_b32 v8, s44
  v_mov_b32 v9, s45
  v_mov_b32 v10, s46
  v_mov_b32 v11, s47
  s_lshl_b32 s30, s2, 5
  v_mov_b32 v3, s30
  v_cmp_eq_u32 vcc, 0, v0
  s_and_saveexec_b64 s[32:33], vcc
  s_cbranch_execz L_end
  buffer_store_dwordx4 v[4:7], v3, s[20:23], 0 offen
  buffer_store_dwordx4 v[8:11], v3, s[20:23], 0 offen offset:16
L_end:
  s_endpgm
"""
    s += FTR.format(vgpr=64, acc=64)
    return s
if __name__ == "__main__":
    names = []
    for n in (1, 4, 8, 12, 16, 24, 32, 40, 48, 56, 63, 72, 96):
        for t in (0, 1):
            f = f"iss_n{n}_t{t}.s"; open(f, "w").write(iss(n, t)); names.append(f)
    print(" ".join(names))
```

```python
from gen_stream import HDR, FTR, PRO, EPI
def hbm(mode):
    s = HDR.format(grid=256, block=64, lds=163840) + PRO
    s += """  s_and_b32 s50, s2, 7
  s_lshr_b32 s51, s2, 3
  s_and_b32 s52, s51, 15
  s_lshr_b32 s53, s51, 4
  s_lshr_b32 s54, s50, 2
  s_and_b32 s55, s50, 3
  s_lshl_b32 s55, s55, 1
  s_add_u32 s55, s55, s53
  s_lshl_b32 s56, s52, 3
  s_add_u32 s56, s56, s55
  s_mul_i32 s25, s56, 786432
  s_mul_i32 s26, s54, 201326592
  s_add_u32 s25, s25, s26
"""
    step = 12288
    if mode == 'glob':
        s += "  s_mul_i32 s25, s2, 12288\n"; step = 12288 * 256
    s += "  s_mov_b32 s28, 0\n"
    if mode.startswith('rot'):
        mul = int(mode[3:])
        s += f"  s_mul_i32 s28, s2, {mul}\n  s_and_b32 s28, s28, 15\n"
    s += "  s_mov_b32 s29, 0\nL_loop:\n"
    s += f"  s_add_u32 s30, s29, s28\n  s_and_b32 s30, s30, 15\n  s_and_b32 s31, s29, 0x30\n  s_or_b32 s30, s30, s31\n  s_mul_i32 s30, s30, {step}\n  s_add_u32 s30, s30, s25\n"
    s += f"  s_add_u32 s31, s30, {100663296 if mode != 'glob' else 201326592}\n"
    for so in ('s30', 's31'):
        for g in range(3):
            s += f"  s_mov_b32 m0, {g*4096}\n  s_nop 0\n"
            for i in range(4): s += f"  buffer_load_dwordx4 v2, s[12:15], {so} offen offset:{i*1024} nt lds\n"
            s += f"  s_add_u32 {so}, {so}, 4096\n"
    s += "  s_add_u32 s29, s29, 1\n  s_cmp_lt_u32 s29, 64\n  s_cbranch_scc1 L_loop\n"
    s += EPI + FTR.format(vgpr=32, acc=32)
    return s
if __name__ == "__main__":
    names = []
    for m in ('real', 'rot1', 'rot3', 'rot5', 'rot7', 'glob', 'real'):
        n = f"hbm_{m}.s"; open(n, "w").write(hbm(m)); names.append(n)
    print(" ".join(names))
```

```python
from gen_stream import HDR, FTR, PRO, EPI
def k(fill, iters=40, nw=3):
    s = HDR.format(grid=256, block=64 * nw, lds=163840) + PRO
    s += "  v_and_b32 v200, 63, v0\n  v_lshlrev_b32 v201, 3, v200\n  v_lshlrev_b32 v202, 2, v200\n v_lshlrev_b32 v200, 4, v200\n"
    s += "  s_memrealtime s[40:41]\n  s_memtime s[42:43]\n  s_waitcnt lgkmcnt(0)\n"
    s += f"  s_mov_b32 s29, {iters}\nL_loop:\n"
    for k in range(48):
        fr = k % 12
        acc = 4 + 16 * (k % 6)
        s += f"  v_mfma_f32_16x16x32_bf16 v[{acc}:{acc+3}], a[{4*fr}:{4*fr+3}], v[148:151], v[{acc}:{acc+3}]\n"
        fr = (k + 6) % 12
        for j, f in enumerate(fill):
            if f == '_': s += f"  v_mfma_f32_16x16x32_bf16 v[{acc+4}:{acc+7}], a[{4*(k%12)}:{4*(k%12)+3}], v[152:155], v[{acc+4}:{acc+7}]\n"
            if f == 't': s += f"  ds_read_b64_tr_b16 a[{4*fr+2*(j%2)}:{4*fr+1+2*(j%2)}], v201 offset:{(k*3+j)*512%65536}\n"
            if f == 'b': s += f"  ds_read_b128 a[{4*fr}:{4*fr+3}], v200 offset:{k*1024}\n"
            if f == 'v': s += f"  v_add_f32 v{210+j}, v{220+j}, v{230+j}\n"
            if f == 'V': s += f"  v_cvt_pk_bf16_f32 v{210+j}, v{220+j}, v{230+j}\n"
            if f == 'd': s += f"  v_add_f32 v240, v240, v{230+j}\n"
            if f == 'e': s += f"  v_exp_f32 v{210+j}, v{220+j}\n"
            if f == 'r': s += f"  v_accvgpr_read_b32 v{210+j}, a{100+j}\n"
            if f == 'w': s += f"  v_accvgpr_write_b32 a{100+j}, v{220+j}\n"
            if f == 's': s += f"  s_add_u32 s50, s51, s52\n"
            if f == 'W': s += f"  s_waitcnt lgkmcnt(15)\n"
            if f == 'c': s += f"  v_cmp_gt_i32 vcc, 100, v241\n  s_cbranch_vccnz L_end2\n"
            if f == 'C': s += f"  v_cmp_gt_i32 vcc, 100, v241\n"
            if f == 'B': s += f"  s_cbranch_vccnz L_end2\n"
            if f == 'F': s += f"  v_readfirstlane_b32 s60, v241\n"
            if f == 'S': s += f"  s_cmp_lt_i32 s60, 100\n  s_cbranch_scc1 L_end2\n"
            if f == 'y': s += f"  ds_write_b32 v202, v241 offset:32768\n"
            if f == 'f': s += f"  ds_read_b32 v245, v202 offset:32768\n"
            if f == 'g': s += f"  s_getreg_b32 s61, hwreg(HW_REG_IB_STS)\n"
            if f == 'J': s += f"  s_branch L_j{k}_{j}\nL_j{k}_{j}:\n"
            if f == 'L': s += f"  buffer_load_dwordx4 v2, s[16:19], s62 offen offset:{(j%4)*1024} lds\n"
            if f == 'M': s += f"  s_mov_b32 m0, 0x10000\n"
            if f == 'N': s += f"  s_nop 0\n"
            if f == '2' and k % 2 == 0: s += "  s_mov_b32 m0, 0x10000\n  s_nop 0\n" + "".join(f"  buffer_load_dwordx4 v2, s[16:19], s62 offen offset:{i*1024} lds\n" for i in range(4))
            if f == '3' and k % 3 == 0: s += "  s_mov_b32 m0, 0x10000\n  s_nop 0\n" + "".join(f"  buffer_load_dwordx4 v2, s[16:19], s62 offen offset:{i*1024} lds\n" for i in range(4))
            if f == 'a': s += f"  ds_add_u32 v202, v241 offset:32768\n"
            if f == 'l': s += f"  v_and_b32 v{210+j}, 0xffff0000, v{220+j}\n"
            if f == 'p': s += f"  v_pk_add_f32 v[{210+2*j}:{211+2*j}], v[{220+2*j}:{221+2*j}], v[230:231]\n"
            if f == 'D': s += f"  v_dot2_f32_bf16 v{210+j}, v{220+j}, v{230+j}, v{210+j}\n"
            if f == 'u': s += f"  v_accvgpr_read_b32 v243, a100\n  v_lshlrev_b32 v242, 16, v243\n  v_and_b32 v243, 0xffff0000, v243\n"
            if f == 'x': s += f"  v_exp_f32 v242, v220\n  v_exp_f32 v243, v221\n  v_add_f32 v240, v240, v242\n  v_add_f32 v240, v240, v243\n  v_cvt_pk_bf16_f32 v244, v242, v243\n"
    s += "  s_sub_u32 s29, s29, 1\n  s_cmp_lg_u32 s29, 0\n  s_cbranch_scc1 L_loop\nL_end2:\n"
    s = s.replace("L_loop:\n", "  v_mov_b32 v241, 1000\n  s_mov_b32 s60, 1000\n  s_mov_b32 s62, 0\n  s_mov_b32 m0, 0x10000\n  s_mov_b64 vcc, 0\nL_loop:\n")
    s += EPI + FTR.format(vgpr=512, acc=256)
    return s
if __name__ == "__main__":
    names = []
    for f in ['_', 't_t', '_tt', 't_tt', 'tv_tv', 'vv_tt', 'vv_vv', 'vvv_vv', 'vvv_v', 'e_vv', 'e_tv', 'ev_tv', 'b_b', 'bv_bv', 'W_tt', 'Wt_tt', 'v_L', 'L_L', 'LL_t', 'LL_tt', 'VV_VV', 'rw_rw', 'e_e', 'tv_tt', 'vvv_ttt']:
        n = f"ic_{f}_.s"; open(n, "w").write(k(f, nw=(1 if 'L' in f else 3))); names.append(n)
    print(" ".join(names))
```
